```python
import torch

def _softmax(x, axis=-1):
    return torch.softmax(x, dim=axis)
def _gelu(x):
    return torch.nn.functional.gelu(x, approximate="tanh")
def _silu(x):
    return torch.nn.functional.silu(x)
def _sigmoid(x):
    return torch.sigmoid(x)
def _layernorm(x, axis=-1, eps=1e-5):
    m = x.mean(dim=axis, keepdim=True)
    v = x.var(dim=axis, keepdim=True, unbiased=False)
    return (x - m) / torch.sqrt(v + eps)
def _scatter_add(tgt, idx, src, axis=0):
    return tgt.clone().index_add_(axis, idx, src)
def _segment_sum(src, seg, n):
    out = torch.zeros((n,) + src.shape[1:], dtype=src.dtype)
    return out.index_add_(0, seg, src)
def _pad(x, pw):
    flat = tuple(v for pair in reversed(pw) for v in pair)
    return torch.nn.functional.pad(x, flat)

kernel_name = 'interleave_layers__gqa_block_cached__glu_gated_bilinear__decode'

def setup_inputs():

    _w = (lambda a: (lambda t: t.to(torch.bfloat16) if t.is_floating_point() else t)(torch.as_tensor(a)))
    def _A_setup():
        B, Sq, D = 1, 1, 512
        Hq, Hkv, Sk, Dh = 32, 32, 32768, 128
        assert Hq % Hkv == 0, (Hq, Hkv)
        return {
            "x": _w((lambda *s: torch.randn(*s, dtype=torch.bfloat16) * 0.1)(B, Sq, D)),
            "k_cache": _w((lambda *s: torch.randn(*s, dtype=torch.bfloat16) * 0.8)(B, Hkv, Sk, Dh)),
            "v_cache": _w((lambda *s: torch.randn(*s, dtype=torch.bfloat16) * 3.2)(B, Hkv, Sk, Dh)),
            "wq": _w((lambda *s: torch.randn(*s, dtype=torch.bfloat16) * 0.8)(D, Hq * Dh) * (D ** -0.5)),
            "wo": _w((lambda *s: torch.randn(*s, dtype=torch.bfloat16) * 3.2)(Hq * Dh, D) * ((Hq * Dh) ** -0.5)),
        }
    _A_in = _A_setup()

    def _B_setup():
        B, S, D, F = 1, 1, 512, 1376
        return {
            "x": _w((lambda *s: torch.randn(*s, dtype=torch.bfloat16) * 0.1)(B, S, D)),
            "w_gate": _w((lambda *s: torch.randn(*s, dtype=torch.bfloat16) * 0.8)(D, F) * (D ** -0.5)),
            "w_up": _w((lambda *s: torch.randn(*s, dtype=torch.bfloat16) * 0.8)(D, F) * (D ** -0.5)),
            "w_down": _w((lambda *s: torch.randn(*s, dtype=torch.bfloat16) * 0.8)(F, D) * (F ** -0.5)),
        }
    _B_in = _B_setup()

    return {
        "A_x": _A_in["x"],
        "A_k_cache": _A_in["k_cache"],
        "A_v_cache": _A_in["v_cache"],
        "A_wq": _A_in["wq"],
        "A_wo": _A_in["wo"],
        "B_x": _B_in["x"],
        "B_w_gate": _B_in["w_gate"],
        "B_w_up": _B_in["w_up"],
        "B_w_down": _B_in["w_down"],
    }

def reference(A_x, A_k_cache, A_v_cache, A_wq, A_wo, B_x, B_w_gate, B_w_up, B_w_down):
    def _A_ref(x, k_cache, v_cache, wq, wo):
        B, Sq, D = x.shape
        Hq, Dh = 32, 128
        Hkv = k_cache.shape[1]
        rep = Hq // Hkv
        q = (lambda x, *d: x.permute(*d))((x @ wq).reshape(B, Sq, Hq, Dh), 0, 2, 1, 3)
        k = (lambda x, n, axis: torch.repeat_interleave(x, n, dim=axis))(k_cache, rep, axis=1)
        v = (lambda x, n, axis: torch.repeat_interleave(x, n, dim=axis))(v_cache, rep, axis=1)
        scores = torch.einsum("bhqd,bhkd->bhqk", q, k) * (Dh ** -0.5)
        p = _softmax(scores, axis=-1)
        o = torch.einsum("bhqk,bhkd->bhqd", p, v)
        return (lambda x, *d: x.permute(*d))(o, 0, 2, 1, 3).reshape(B, Sq, Hq * Dh) @ wo

    def _B_ref(x, w_gate, w_up, w_down):
        g = torch.einsum("bsd,df->bsf", x, w_gate)
        u = torch.einsum("bsd,df->bsf", x, w_up)
        h = g * u
        return torch.einsum("bsf,fd->bsd", h, w_down)

    x = A_x
    x = x + _A_ref(_layernorm(x, axis=-1), A_k_cache, A_v_cache, A_wq, A_wo)
    x = x + _B_ref(_layernorm(x, axis=-1), B_w_gate, B_w_up, B_w_down)
    x = x + _A_ref(_layernorm(x, axis=-1), A_k_cache, A_v_cache, A_wq, A_wo)
    x = x + _B_ref(_layernorm(x, axis=-1), B_w_gate, B_w_up, B_w_down)
    return x
```

```python
import re

TRANS = ("v_exp_f32", "v_log_f32", "v_rcp_f32", "v_rsq_f32", "v_sqrt_f32", "v_sin_f32", "v_cos_f32")
_REG = re.compile(r"^(-|abs\()?([vas])(\d+)\)?$")
_RNG = re.compile(r"^(-)?([vas])\[(\d+):(\d+)\]$")


def regs_of(op):
    op = op.strip()
    m = _REG.match(op)
    if m:
        return {(m.group(2), int(m.group(3)))}
    m = _RNG.match(op)
    if m:
        return {(m.group(2), k) for k in range(int(m.group(3)), int(m.group(4)) + 1)}
    if op in ("vcc", "vcc_lo", "vcc_hi"):
        return {("s", "vcc")}
    if op in ("exec", "exec_lo", "exec_hi"):
        return {("s", "exec")}
    if op == "m0":
        return {("s", "m0")}
    return set()


def vec(rs):
    return {r for r in rs if r[0] in "va"}


def sca(rs):
    return {r for r in rs if r[0] == "s"}


class Ins:
    def __init__(self, text):
        self.text = text
        self.label = None
        self.comment = False
        t = text.split(";")[0].strip()
        if not t:
            self.comment = True
            self.mn = ""
            return
        if t.endswith(":"):
            self.label = t[:-1]
            self.mn = ""
            return
        if t.startswith("."):
            self.comment = True
            self.mn = ""
            return
        parts = t.split(None, 1)
        mn = parts[0]
        self.mn = mn
        rest = parts[1] if len(parts) > 1 else ""
        ops = [o.strip() for o in re.split(r",(?![^\[]*\])", rest)] if rest else []
        mods = ""
        if ops:
            last = ops[-1].split(None, 1)
            ops[-1] = last[0]
            mods = last[1] if len(last) > 1 else ""
        self.ops = ops
        self.mods = mods
        R = [regs_of(o) for o in ops]
        self.mfma = mn.startswith("v_mfma")
        self.valu = mn.startswith("v_") and not self.mfma
        self.vmem = mn.startswith(("buffer_", "global_"))
        self.ds = mn.startswith("ds_")
        self.salu = mn.startswith("s_")
        self.dpp = "_dpp" in mn
        self.perml = mn.startswith("v_permlane")
        self.rdlane = mn.startswith(("v_readlane", "v_readfirstlane"))
        self.trans = mn.replace("_e32", "").replace("_e64", "") in TRANS
        self.dot = mn.startswith("v_dot")
        self.w = set()
        self.r = set()
        self.A = self.B = self.C = set()
        self.widestore = set()
        allr = lambda xs: set().union(*xs) if xs else set()
        if self.mfma:
            self.w = R[0]
            self.A, self.B, self.C = R[1], R[2], R[3]
            self.r = self.A | self.B | self.C
        elif self.valu:
            self.w = set(R[0])
            self.r = allr(R[1:])
            if self.perml:
                self.w = R[0] | R[1]
                self.r = R[0] | R[1]
            if mn.startswith(("v_fmac", "v_dot2c", "v_writelane")) or self.dpp:
                self.r |= R[0]
            if self.dot:
                self.C = R[3] if len(R) > 3 else R[0]
                self.A, self.B = R[1], R[2]
        elif self.vmem:
            if "_load" in mn:
                self.w = R[0]
                self.r = allr(R[1:])
            elif mn.startswith("buffer_"):
                self.r = allr(R)
                if "x3" in mn or "x4" in mn:
                    self.widestore = R[0]
            else:
                self.r = allr(R)
                if "x3" in mn or "x4" in mn:
                    self.widestore = R[1]
        elif self.ds:
            if "_read" in mn:
                self.w = R[0]
                self.r = allr(R[1:])
            else:
                self.r = allr(R)
        elif self.salu:
            if mn.startswith(("s_cmp", "s_cbranch", "s_branch", "s_waitcnt", "s_nop", "s_sleep", "s_barrier", "s_setpc", "s_endpgm", "s_setprio")):
                self.r = allr(R)
                if mn in ("s_cbranch_vccz", "s_cbranch_vccnz"):
                    self.r = {("s", "vcc")}
            else:
                self.w = R[0] if R else set()
                self.r = allr(R[1:])

    @property
    def real(self):
        return self.mn != ""

    def states(self):
        if self.mn == "s_nop":
            return int(self.ops[0]) + 1
        return 1


def need(P, C):
    n = 0
    if P.valu:
        W = vec(P.w)
        SW = sca(P.w)
        if W:
            if C.mfma and W & C.r:
                n = max(n, 2)
            if (C.dpp or C.perml) and W & C.r:
                n = max(n, 2)
            if C.rdlane and W & C.r:
                n = max(n, 1)
            if P.trans and (C.valu or C.mfma) and W & C.r:
                n = max(n, 1)
            if P.dot and (C.valu or C.mfma or C.vmem or C.ds) and W & (C.r | C.w):
                same = C.dot and C.mn == P.mn and not (W & (C.A | C.B))
                if not same:
                    n = max(n, 3)
        if SW:
            if (C.valu or C.mfma) and SW & C.r:
                n = max(n, 2)
            if C.vmem and SW & C.r:
                n = max(n, 5)
            if C.salu and SW & C.r and not C.mn.startswith("s_cbranch"):
                n = max(n, 2)
    if P.mfma:
        D = P.w
        if C.mfma:
            if D & C.C and C.C != D:
                n = max(n, 6)
            if D & (C.A | C.B):
                n = max(n, 8)
            if D & C.w and C.C != D:
                n = max(n, 6)
        elif C.valu or C.vmem or C.ds:
            if D & (C.r | C.w):
                n = max(n, 8)
        if C.valu and vec(P.C) & C.w:
            n = max(n, 3)
    if P.widestore:
        if C.valu and P.widestore & C.w:
            n = max(n, 2)
        elif (C.vmem or C.ds) and P.widestore & C.w:
            n = max(n, 1)
    return n


class Gen:
    def __init__(self):
        self.L = []
        self.vmq = []
        self.uid = 0

    def __call__(self, text):
        for line in text.split("\n"):
            line = line.strip()
            if line:
                self.L.append(Ins(line))

    def lab(self, stem):
        self.uid += 1
        return f"L_{stem}_{self.uid}"

    def vm(self, text, tag=None):
        self(text)
        self.vmq.append(tag)

    def waitvm(self, tag):
        idx = max(i for i, t in enumerate(self.vmq) if t == tag)
        n = len(self.vmq) - 1 - idx
        self(f"s_waitcnt vmcnt({min(n, 63)})")

    def waitvm0(self):
        self("s_waitcnt vmcnt(0)")

    def fix_hazards(self):
        inserted = 0
        while True:
            L = self.L
            labels = {ins.label: i for i, ins in enumerate(L) if ins.label}
            calls = {}
            for i, ins in enumerate(L):
                if ins.mn == "s_call_b64":
                    calls.setdefault(ins.ops[0], []).append(i + 1)

            def succ(i):
                ins = L[i]
                if ins.mn == "s_endpgm":
                    return []
                if ins.mn == "s_branch":
                    return [labels[ins.ops[0]]]
                if ins.mn == "s_call_b64":
                    return [labels[ins.ops[1]]]
                if ins.mn == "s_setpc_b64":
                    return calls.get(ins.ops[0], [])
                out = [i + 1] if i + 1 < len(L) else []
                if ins.mn.startswith("s_cbranch"):
                    out.append(labels[ins.ops[0]])
                return out

            add = {}
            for i, P in enumerate(L):
                if not P.real or not (P.valu or P.mfma or P.widestore):
                    continue
                stack = [(j, 0) for j in succ(i)]
                seen = set()
                while stack:
                    j, d = stack.pop()
                    if (j, d) in seen or d >= 8:
                        continue
                    seen.add((j, d))
                    C = L[j]
                    if C.real:
                        k = need(P, C)
                        if k > d:
                            add[j] = max(add.get(j, 0), k - d)
                        nd = d + C.states()
                    else:
                        nd = d
                    for s in succ(j):
                        stack.append((s, nd))
            if not add:
                return inserted
            first = sorted(add)
            done = []
            last = -100
            for j in first:
                if j - last > 10:
                    done.append(j)
                    last = j
            for j in reversed(done):
                L.insert(j, Ins(f"s_nop {add[j] - 1}"))
                inserted += 1

    def text(self):
        out = []
        for ins in self.L:
            out.append(ins.text if (ins.label or ins.text.startswith(".")) else "    " + ins.text)
        return "\n".join(out) + "\n"
```

```python
import struct, math, sys
from asmlib import Gen

KNAME = "interleave_layers__gqa_block_cached__glu_gated_bilinear__decode_kernel"
HEADER = open("interleave_layers__gqa_block_cached__glu_gated_bilinear__decode.s.ref").read().split("; Override launch")[0]


def f2u(x):
    return struct.unpack("<I", struct.pack("<f", x))[0]


LST = 0x40000
P1, ML, Y1, Y2, HH, QQ = 0x0, 0x20000, 0x21000, 0x26000, 0x2B000, 0x2D000
DIAG = 0x100000
STASH_W = 9 * 4096
SC = 0
SC_FIN = SC
SC_ML = SC + 2048
SC_Q1 = SC + 2304
SC_QB = SC_Q1 + 2048
RED_B = SC_QB + 1024
RED_C = RED_B + 512
RED_D = RED_C + 512
RED_E = RED_D + 512
CS_C = RED_E + 512
CS_E = CS_C + 512
STASH0 = 10240
assert CS_E + 512 <= STASH0
LDS_TOTAL = STASH0 + 4 * STASH_W
vK, vV, vL = 1, 2, 3
vMASK = 4
vACC = 8
vSUM, vMC, vM, vX = 12, 13, 14, 15
vQ = 16
vS, vP, vA0, vA1 = 32, 36, 40, 44
vH = 48
NSLOT = 14
sWAVE = 3
rK, rV, rWS, rWQ, rWO, rWG, rWU, rWD = 28, 32, 36, 40, 44, 48, 52, 56
sOUT, sDBG = 60, 62
sROLE, sX, sI, sBASE, sOFF, sC = 64, 65, 66, 67, 68, 69
sSEL_LO, sSEL_HI, sLB, sLOCAL, sU0, sCNT = 70, 71, 72, 73, 74, 75
sRET = 76
sSPIN, sFLAGSTEP = 78, 79
sDM = 80
sHEAD, sONES = 82, 83
sW = 84
sT0, sT1, sT2, sT3 = 92, 93, 94, 95
sXCC = 96
sSV = 97


def slot(s):
    return ("v", 64 + 32 * s) if s < 6 else ("a", 32 * (s - 6))


def R(kind_base, off, n):
    k, b = kind_base
    return f"{k}[{b + off}:{b + off + n - 1}]" if n > 1 else f"{k}{b + off}"


def srd(r):
    return f"s[{r}:{r + 3}]"


class K:
    def __init__(self, gap=3, l2tiles=(), wpol="", warm=True, diag=False, presleep=0, ackbar=True,
                 h1sleep=2, force_nonlocal=False, spin_limit=1 << 22, p2pol="nt", warm_step=48, warm_step2=30,
                 p2prefetch=0, codewarm=False):
        self.o = dict(locals())
        self.g = Gen()
        self.gap = gap
        self.diag = diag
        self.nstamp = 0

    def stamp(self, k):
        if self.diag:
            self.g(f"s_memrealtime s[{4 + 2 * k}:{5 + 2 * k}]")

    def exec_set(self, mask):
        g = self.g
        lo, hi = mask & 0xFFFFFFFF, mask >> 32
        if mask == (1 << 64) - 1:
            g("s_mov_b64 exec, -1")
        elif hi == 0 and lo <= 64:
            g(f"s_mov_b64 exec, {lo}")
        else:
            g(f"s_mov_b32 exec_lo, {hex(lo)}")
            g(f"s_mov_b32 exec_hi, {hex(hi)}")

    def kregs(self, t, s):
        return ("v", vH) if t == 4 else slot(s)

    def issue_tile(self, t, s, pol, konly=False, vonly=False):
        g = self.g
        g(f"s_add_u32 s{sOFF}, s{sBASE}, {t * 4096}")
        kb = self.kregs(t, s) if self.cur_pass == 1 else slot(s)
        for j in range(4):
            g.vm(f"buffer_load_dwordx4 {R(kb, 4 * j, 4)}, v{vK}, {srd(rK)}, s{sOFF} offen offset:{64 * j} {pol}", ("K", t))
        for j in range(4):
            g.vm(f"buffer_load_dwordx4 {R(slot(s), 16 + 4 * j, 4)}, v{vV}, {srd(rV)}, s{sOFF} offen offset:{256 * j} {pol}", ("V", t))

    def pv(self, pp, vb, voff, wait=None):
        g = self.g

        def mk(r):
            a = vA0 if r % 2 == 0 else vA1
            for k in range(4):
                g(f"v_and_b32 v{a + k}, v{pp + r}, v{vMASK + k}")

        def mm(r):
            a = vA0 if r % 2 == 0 else vA1
            g(f"v_mfma_f32_16x16x32_bf16 v[{vACC}:{vACC + 3}], v[{a}:{a + 3}], {R(vb, voff + 4 * r, 4)}, v[{vACC}:{vACC + 3}]")
        mk(0); mk(1)
        if wait:
            wait()
        mm(0); mk(2); mm(1); mk(3); mm(2); mm(3)

    def compute_tile(self, kb, vb, waitk=None, waitv=None, hook=None):
        g = self.g
        if waitk:
            waitk()
        for j in range(4):
            c = "0" if j == 0 else f"v[{vS}:{vS + 3}]"
            g(f"v_mfma_f32_16x16x32_bf16 v[{vS}:{vS + 3}], {R(kb, 4 * j, 4)}, v[{vQ + 4 * j}:{vQ + 4 * j + 3}], {c}")
        if hook:
            hook()
        g(f"v_max3_f32 v{vP}, v{vS}, v{vS + 1}, v{vS + 2}")
        g(f"v_max_f32 v{vP}, v{vP}, v{vS + 3}")
        g(f"v_cmp_gt_f32 vcc, v{vP}, v{vM}")
        sk = g.lab("nr")
        g(f"s_cbranch_vccz {sk}")
        g(f"s_call_b64 s[{sRET}:{sRET + 1}], L_rescale")
        g(f"{sk}:")
        for r in range(4):
            g(f"v_fma_f32 v{vP + r}, v{vS + r}, s{sC}, -v{vMC}")
        for r in range(4):
            g(f"v_exp_f32 v{vP + r}, v{vP + r}")
        g(f"v_add_f32 v{vS}, v{vP}, v{vP + 1}")
        g(f"v_add_f32 v{vS + 1}, v{vP + 2}, v{vP + 3}")
        for r in range(4):
            g(f"v_cvt_pk_bf16_f32 v{vP + r}, v{vP + r}, v{vP + r}")
        g(f"v_add_f32 v{vS}, v{vS}, v{vS + 1}")
        g(f"v_add_f32 v{vSUM}, v{vSUM}, v{vS}")
        self.pv(vP, vb, 16 if vb != ("v", vH) else 0, waitv)

    def reg_tile(self, t, s, landed=False, hook=None, kb=None):
        g = self.g
        kb = kb or slot(s)
        if landed:
            self.compute_tile(kb, slot(s), hook=hook)
        else:
            self.compute_tile(kb, slot(s), lambda: g.waitvm(("K", t)), lambda: g.waitvm(("V", t)), hook)

    def allreduce_groups(self, v, tmp, op):
        g = self.g
        g(f"v_mov_b32 v{tmp}, v{v}")
        g(f"v_permlane32_swap_b32 v{v}, v{tmp}")
        g(f"{op} v{v}, v{v}, v{tmp}")
        g(f"v_mov_b32 v{tmp}, v{v}")
        g(f"v_permlane16_swap_b32 v{v}, v{tmp}")
        g(f"{op} v{v}, v{v}, v{tmp}")

    def row_reduce(self, regs, op="v_add_f32", steps=(8, 4, 2, 1)):
        g = self.g
        for sh in steps:
            for v in regs:
                g(f"{op}_dpp v{v}, v{v}, v{v} row_ror:{sh} row_mask:0xf bank_mask:0xf")

    def bf16r(self, v, tmp=None):
        g = self.g
        g(f"v_cvt_pk_bf16_f32 v{v}, v{v}, v{v}")
        g(f"v_and_b32 v{v}, 0xffff0000, v{v}")

    def ln_scalars(self, s1, s2, t):
        g = self.g
        g(f"v_mul_f32 v{s1}, {hex(f2u(1.0 / 512))}, v{s1}")
        g(f"v_mul_f32 v{s2}, {hex(f2u(1.0 / 512))}, v{s2}")
        g(f"v_fma_f32 v{s2}, -v{s1}, v{s1}, v{s2}")
        g(f"v_max_f32 v{s2}, 0, v{s2}")
        g(f"v_cvt_pk_bf16_f32 v{t}, v{s1}, v{s2}")
        g(f"v_and_b32 v{s2}, 0xffff0000, v{t}")
        g(f"v_lshlrev_b32 v{s1}, 16, v{t}")
        g(f"v_add_f32 v{s2}, {hex(f2u(1e-5))}, v{s2}")
        self.bf16r(s2)
        g(f"v_sqrt_f32 v{s2}, v{s2}")
        self.bf16r(s2)
        g(f"v_rcp_f32 v{s2}, v{s2}")

    def poll(self, loads, regs, tmp, sleep=0):
        g = self.g
        top, ok = g.lab("poll"), g.lab("got")
        g(f"s_mov_b32 s{sSPIN}, {self.o['spin_limit']}")
        g(f"{top}:")
        for ld in loads:
            g(ld)
        g("s_waitcnt vmcnt(0)")
        rs = list(regs)
        g(f"v_max3_u32 v{tmp}, v{rs[0]}, v{rs[1]}, v{rs[2 % len(rs)]}")
        rs = rs[3:]
        while rs:
            a = rs.pop(0)
            b = rs.pop(0) if rs else a
            g(f"v_max3_u32 v{tmp}, v{tmp}, v{a}, v{b}")
        g(f"v_cmp_eq_u32 vcc, -1, v{tmp}")
        g(f"s_cbranch_vccz {ok}")
        if sleep:
            g(f"s_sleep {sleep}")
        g(f"s_sub_u32 s{sSPIN}, s{sSPIN}, 1")
        g(f"s_cbranch_scc0 {top}")
        g("s_branch L_exit")
        g(f"{ok}:")

    def cols(self):
        c = []
        for d in range(8):
            c.append(vM if d == 0 else vQ + d - 1)
            c.append(vQ + 8 + d)
        return c

    def perm_weights(self):
        g = self.g
        c = self.cols()
        for d in range(8):
            g(f"v_perm_b32 v{c[2 * d]}, v{vQ + 8 + d}, v{vQ + d}, s{sSEL_LO}")
            g(f"v_perm_b32 v{c[2 * d + 1]}, v{vQ + 8 + d}, v{vQ + d}, s{sSEL_HI}")

    def dots(self, src):
        g = self.g
        for k, c in enumerate(self.cols()):
            g(f"v_dot2_f32_bf16 v{vS + k}, v{c}, {src}, 0")

    def reduce16(self, lds_off, extras=None):
        g = self.g
        a = vS
        for k in range(8):
            g(f"v_permlane32_swap_b32 v{a + k}, v{a + k + 8}")
        if extras:
            g(f"v_permlane32_swap_b32 v{extras[0]}, v{extras[1]}")
        for k in range(8):
            g(f"v_add_f32 v{a + k}, v{a + k}, v{a + k + 8}")
        if extras:
            g(f"v_add_f32 v{extras[0]}, v{extras[0]}, v{extras[1]}")
        for k in range(4):
            g(f"v_permlane16_swap_b32 v{a + k}, v{a + k + 4}")
        if extras:
            g(f"v_mov_b32 v{extras[1]}, v{extras[0]}")
        for k in range(4):
            g(f"v_add_f32 v{a + k}, v{a + k}, v{a + k + 4}")
        if extras:
            g(f"v_permlane16_swap_b32 v{extras[0]}, v{extras[1]}")
        regs = [a, a + 1, a + 2, a + 3]
        g(f"v_lshrrev_b32 v{a + 4}, 4, v0")
        if extras:
            g(f"v_add_f32 v{extras[0]}, v{extras[0]}, v{extras[1]}")
            regs.append(extras[0])
        g(f"v_and_b32 v{a + 5}, 3, v{a + 4}")
        g(f"v_lshrrev_b32 v{a + 4}, 2, v{a + 4}")
        g(f"v_lshlrev_b32 v{a + 4}, 7, v{a + 4}")
        g(f"v_lshl_add_u32 v{a + 6}, v{a + 5}, 4, v{a + 4}")
        if extras:
            g(f"v_lshl_add_u32 v{a + 7}, v{a + 5}, 1, v{a + 4}")
        self.row_reduce(regs)
        self.exec_set(0x0001000100010001)
        g(f"ds_write_b128 v{a + 6}, v[{a}:{a + 3}] offset:{lds_off}")
        if extras:
            self.exec_set(0x0000000100000001)
            g(f"ds_write_b32 v{a + 7}, v{extras[0]} offset:{lds_off + 64}")
        self.exec_set((1 << 64) - 1)

    def final_read(self, lds_off, nw, dst, stats=None, cs=None):
        g = self.g
        a = vS
        g(f"v_and_b32 v8, 15, v0")
        g(f"v_lshlrev_b32 v8, 2, v8")
        g(f"v_mov_b32 v9, 0")
        for w in range(nw):
            g(f"ds_read_b32 v{a + w}, v8 offset:{lds_off + 128 * w}")
        if stats:
            for w in range(4):
                g(f"ds_read_b64 v[{a + 4 + 2 * w}:{a + 5 + 2 * w}], v9 offset:{lds_off + 128 * w + 64}")
            for w in range(4):
                g(f"ds_read_b32 v{a + 12 + w}, v8 offset:{cs + 128 * w}")
        g("s_waitcnt lgkmcnt(0)")
        if stats:
            s1, s2 = stats
            g(f"v_add_f32 v{a + 4}, v{a + 4}, v{a + 6}")
            g(f"v_add_f32 v{a + 5}, v{a + 5}, v{a + 7}")
            g(f"v_add_f32 v{a + 8}, v{a + 8}, v{a + 10}")
            g(f"v_add_f32 v{a + 9}, v{a + 9}, v{a + 11}")
            g(f"v_add_f32 v{s1}, v{a + 4}, v{a + 8}")
            g(f"v_add_f32 v{s2}, v{a + 5}, v{a + 9}")
            g(f"v_add_f32 v{a + 12}, v{a + 12}, v{a + 13}")
            g(f"v_add_f32 v{a + 14}, v{a + 14}, v{a + 15}")
        g(f"v_add_f32 v{dst}, v{a}, v{a + 1}")
        if nw == 4:
            g(f"v_add_f32 v{a + 2}, v{a + 2}, v{a + 3}")
            g(f"v_add_f32 v{dst}, v{dst}, v{a + 2}")
        if stats:
            g(f"v_add_f32 v{a + 12}, v{a + 12}, v{a + 14}")
            self.ln_scalars(s1, s2, a + 4)
            g(f"v_fma_f32 v{dst}, -v{s1}, v{a + 12}, v{dst}")
            g(f"v_mul_f32 v{dst}, v{dst}, v{s2}")

    def store_local(self, text):
        g = self.g
        a, b = g.lab("stg"), g.lab("std")
        g(f"s_cmp_eq_u32 s{sLOCAL}, 0")
        g(f"s_cbranch_scc1 {a}")
        for t in text:
            g(t)
        g(f"s_branch {b}")
        g(f"{a}:")
        for t in text:
            g(t + " sc1")
        g(f"{b}:")

    def pre_poll_global(self):
        g = self.g
        if self.o["ackbar"]:
            g("s_waitcnt vmcnt(0)")
            g("s_barrier")
        if self.o["presleep"]:
            g(f"s_sleep {self.o['presleep']}")

    def gather_y(self, region):
        g = self.g
        g(f"v_lshlrev_b32 v8, 3, v0")
        for k in range(4):
            g(f"s_add_u32 s{sW + k}, s{sLB}, {region + 4096 * k}")
        loads = [f"buffer_load_dwordx2 v[{vS + 2 * k}:{vS + 2 * k + 1}], v8, {srd(rWS)}, s{sW + k // 2} offen offset:{2048 * (k % 2)} sc1" for k in range(8)]
        self.poll(loads, range(vS, vS + 16), 12)
        a = vS
        for st in (2, 4, 8):
            for k in range(0, 16, 2 * st):
                g(f"v_add_f32 v{a + k}, v{a + k}, v{a + k + st}")
                g(f"v_add_f32 v{a + k + 1}, v{a + k + 1}, v{a + k + st + 1}")
        g(f"v_lshlrev_b32 v{a + 2}, 16, v{vX}")
        g(f"v_and_b32 v{a + 3}, 0xffff0000, v{vX}")
        g(f"v_cvt_pk_bf16_f32 v{a}, v{a}, v{a + 1}")
        g(f"v_and_b32 v{a + 1}, 0xffff0000, v{a}")
        g(f"v_lshlrev_b32 v{a}, 16, v{a}")
        g(f"v_add_f32 v{a + 1}, v{a + 1}, v{a + 3}")
        g(f"v_add_f32 v{a}, v{a}, v{a + 2}")
        g(f"v_cvt_pk_bf16_f32 v{vX}, v{a}, v{a + 1}")

    def wload(self, which, tmp):
        g = self.g
        pol = self.o["wpol"]
        W0, W1 = vQ, vQ + 8
        if which == "o":
            g(f"v_lshlrev_b32 v{tmp}, 11, v0")
            g(f"s_lshl_b32 s{sT0}, s{sX}, 19")
            g(f"s_lshl_b32 s{sT1}, s{sI}, 5")
            g(f"s_add_u32 s{sT0}, s{sT0}, s{sT1}")
            for reg, off in ((W0, 0), (W0 + 4, 16), (W1, 1024), (W1 + 4, 1040)):
                g.vm(f"buffer_load_dwordx4 v[{reg}:{reg + 3}], v{tmp}, {srd(rWO)}, s{sT0} offen offset:{off} {pol}", "W")
        elif which == "gu":
            g(f"v_mul_u32_u24 v{tmp}, 5504, v0")
            g(f"s_add_u32 s{sT0}, s{sU0}, s{sI}")
            g(f"s_lshl_b32 s{sT0}, s{sT0}, 4")
            for reg, r, off in ((W0, rWG, 0), (W0 + 4, rWU, 0), (W1, rWG, 2752), (W1 + 4, rWU, 2752)):
                g(f"buffer_load_dwordx4 v[{reg}:{reg + 3}], v{tmp}, {srd(r)}, s{sT0} offen offset:{off} {pol}")
        elif which == "d":
            sk = g.lab("nowd")
            g(f"s_cmp_ge_u32 s{sWAVE}, 2")
            g(f"s_cbranch_scc1 {sk}")
            g(f"v_lshlrev_b32 v{tmp}, 11, v0")
            g(f"s_lshl_b32 s{sT0}, s{sU0}, 13")
            g(f"s_lshl_b32 s{sT1}, s{sI}, 5")
            g(f"s_add_u32 s{sT0}, s{sT0}, s{sT1}")
            g(f"s_mov_b64 exec, s[{sDM}:{sDM + 1}]")
            for reg, off in ((W0, 0), (W0 + 4, 16), (W1, 1024), (W1 + 4, 1040)):
                g(f"buffer_load_dwordx4 v[{reg}:{reg + 3}], v{tmp}, {srd(rWD)}, s{sT0} offen offset:{off} {pol}")
            g("s_mov_b64 exec, -1")
            g(f"{sk}:")
        elif which == "q":
            g(f"v_lshlrev_b32 v{tmp}, 14, v0")
            g(f"s_lshl_b32 s{sT0}, s{sROLE}, 5")
            g(f"s_add_u32 s{sT1}, s{sT0}, 8192")
            for reg, so, off in ((W0, sT0, 0), (W0 + 4, sT0, 16), (W1, sT1, 0), (W1 + 4, sT1, 16)):
                g(f"buffer_load_dwordx4 v[{reg}:{reg + 3}], v{tmp}, {srd(rWQ)}, s{so} offen offset:{off} {pol}")

    def warm_weights(self, dead):
        g = self.g
        a = vS
        l1, l2, l3, e = g.lab("w1"), g.lab("w2"), g.lab("w3"), g.lab("we")
        g(f"v_and_b32 v{a}, 63, v0")
        g(f"s_cmp_ge_u32 s{sWAVE}, 2")
        g(f"s_cbranch_scc1 {l2}")
        g(f"v_lshlrev_b32 v{a + 1}, 7, v0")
        g(f"s_lshl_b32 s{sT0}, s{sROLE}, 14")
        g(f"buffer_load_dword v{dead}, v{a + 1}, {srd(rWO)}, s{sT0} offen")
        g(f"s_branch {e}")
        g(f"{l2}:")
        g(f"v_lshrrev_b32 v{a + 1}, 2, v{a}")
        g(f"v_mul_u32_u24 v{a + 1}, 2752, v{a + 1}")
        g(f"v_and_b32 v{a + 2}, 3, v{a}")
        g(f"v_mul_u32_u24 v{a + 2}, 112, v{a + 2}")
        g(f"v_add_u32 v{a + 1}, v{a + 1}, v{a + 2}")
        g(f"s_mul_i32 s{sT0}, s{sI}, {16 * 2752}")
        g(f"s_lshl_b32 s{sT1}, s{sU0}, 4")
        g(f"s_add_u32 s{sT0}, s{sT0}, s{sT1}")
        g(f"s_cmp_eq_u32 s{sWAVE}, 3")
        g(f"s_cbranch_scc1 {l3}")
        g(f"buffer_load_dword v{dead}, v{a + 1}, {srd(rWG)}, s{sT0} offen")
        g(f"v_min_u32 v{a}, 43, v{a}")
        g(f"v_lshlrev_b32 v{a}, 7, v{a}")
        g(f"s_mul_i32 s{sT0}, s{sI}, {44 * 128}")
        g(f"s_lshl_b32 s{sT1}, s{sU0}, 13")
        g(f"s_add_u32 s{sT0}, s{sT0}, s{sT1}")
        g(f"buffer_load_dword v{dead}, v{a}, {srd(rWD)}, s{sT0} offen")
        g(f"s_branch {e}")
        g(f"{l3}:")
        g(f"buffer_load_dword v{dead}, v{a + 1}, {srd(rWU)}, s{sT0} offen")
        g(f"{e}:")

    def prologue(self):
        g = self.g
        g("s_cmp_ge_u32 s2, 256")
        g("s_cbranch_scc1 L_end")
        g("s_load_dwordx16 s[4:19], s[0:1], 0")
        g("s_load_dwordx8 s[20:27], s[0:1], 64")
        g("v_lshrrev_b32 v1, 6, v0")
        g("v_and_b32 v32, 63, v0")
        g(f"v_readfirstlane_b32 s{sWAVE}, v1")
        g("v_lshrrev_b32 v33, 4, v32")
        g("v_and_b32 v34, 15, v32")
        g(f"v_lshlrev_b32 v{vK}, 8, v34")
        g(f"v_lshl_add_u32 v{vK}, v33, 4, v{vK}")
        g(f"v_lshlrev_b32 v{vV}, 10, v33")
        g(f"v_lshl_add_u32 v{vV}, v34, 4, v{vV}")
        g(f"s_and_b32 s{sX}, s2, 7")
        g(f"s_lshr_b32 s{sI}, s2, 3")
        g(f"s_lshl_b32 s{sROLE}, s{sX}, 5")
        g(f"s_add_u32 s{sROLE}, s{sROLE}, s{sI}")
        g(f"s_lshl_b32 s{sBASE}, s{sROLE}, 20")
        g(f"s_lshl_b32 s{sT0}, s{sWAVE}, 18")
        g(f"s_add_u32 s{sBASE}, s{sBASE}, s{sT0}")
        for r in (rK, rV):
            g(f"s_mov_b32 s{r + 2}, 0x10000000")
            g(f"s_mov_b32 s{r + 3}, 0x20000")
        g("s_waitcnt lgkmcnt(0)")
        for r, p in ((rK, 6), (rV, 8)):
            g(f"s_mov_b32 s{r}, s{p}")
            g(f"s_and_b32 s{r + 1}, s{p + 1}, 0xffff")
        self.cur_pass = 1
        self.issue_tile(0, 0, self.pol1(0))
        g("v_lshlrev_b32 v35, 2, v0")
        g("v_lshlrev_b32 v36, 4, v32")
        g.vm(f"global_load_dword v{vX}, v35, s[4:5]", "x")
        g.vm("global_load_dwordx4 v[40:43], v36, s[4:5]", "x")
        for r, p, n in ((rWS, 26, 0x40000000), (rWQ, 10, 4 << 20), (rWO, 12, 4 << 20), (rWG, 16, 512 * 2752), (rWU, 18, 512 * 2752), (rWD, 20, 1376 * 1024)):
            g(f"s_mov_b32 s{r}, s{p}")
            g(f"s_and_b32 s{r + 1}, s{p + 1}, 0xffff")
            g(f"s_mov_b32 s{r + 2}, {hex(n)}")
            g(f"s_mov_b32 s{r + 3}, 0x20000")
        g(f"s_mov_b64 s[{sOUT}:{sOUT + 1}], s[22:23]")
        g(f"s_mov_b64 s[{sDBG}:{sDBG + 1}], s[24:25]")
        g(f"s_lshr_b32 s{sHEAD}, s{sROLE}, 3")
        g(f"v_lshlrev_b32 v{vM}, 15, v33")
        g(f"v_lshl_add_u32 v{vM}, v34, 4, v{vM}")
        g(f"s_mul_i32 s{sT0}, s{sWAVE}, {STASH_W}")
        g(f"s_add_u32 s{sT0}, s{sT0}, {STASH0}")
        g(f"v_add_u32 v{vL}, s{sT0}, v36")
        g(f"s_lshl_b32 s{sT2}, s{sWAVE}, 20")
        g(f"s_lshl_b32 s{sT1}, s{sHEAD}, 8")
        g(f"s_add_u32 s{sT2}, s{sT2}, s{sT1}")
        self.stamp(0)

    def issue_wq(self, tp):
        g = self.g
        b = ("a", 192 + 16 * (tp % 4))
        for r in range(4):
            g(f"s_add_u32 s{sOFF}, s{sT2}, {(16 * tp + r) * 8192}")
            g.vm(f"buffer_load_dwordx4 {R(b, 4 * r, 4)}, v{vM}, {srd(rWQ)}, s{sOFF} offen", ("WQ", tp))

    def setup_consts(self):
        g = self.g
        c = math.log2(math.e) / math.sqrt(128.0)
        g(f"s_mov_b32 s{sC}, {hex(f2u(c))}")
        g(f"s_mov_b32 s{sSEL_LO}, 0x05040100")
        g(f"s_mov_b32 s{sSEL_HI}, 0x07060302")
        g(f"s_mov_b32 s{sONES}, 0x3f803f80")
        g(f"s_mov_b32 s{sLB}, 0")
        g(f"s_mul_i32 s{sU0}, s{sX}, 43")
        g(f"s_add_u32 s{sCNT}, s{sU0}, 43")
        g(f"s_lshr_b32 s{sU0}, s{sU0}, 1")
        g(f"s_lshr_b32 s{sCNT}, s{sCNT}, 1")
        g(f"s_sub_u32 s{sCNT}, s{sCNT}, s{sU0}")
        g(f"s_lshl_b32 s{sT0}, s{sCNT}, 2")
        g(f"s_sub_u32 s{sT0}, s{sT0}, 64")
        g(f"s_lshl_b32 s{sT0}, 1, s{sT0}")
        g(f"s_sub_u32 s{sT0}, s{sT0}, 1")
        g(f"s_cmp_eq_u32 s{sWAVE}, 0")
        g(f"s_cselect_b32 s{sDM}, -1, s{sT0}")
        g(f"s_cselect_b32 s{sDM + 1}, -1, 0")
        g(f"s_and_b32 s{sT0}, s{sI}, 7")
        g(f"s_cmp_eq_u32 s{sWAVE}, 0")
        g(f"s_cselect_b32 s{sFLAGSTEP}, s{sT0}, 63")
        g(f"s_getreg_b32 s{sXCC}, hwreg(HW_REG_XCC_ID)")
        g(f"s_and_b32 s{sXCC}, s{sXCC}, 15")
        g(f"s_or_b32 s{sXCC}, s{sXCC}, 0x80")
        g("v_and_b32 v35, 1, v34")
        g("v_cmp_eq_u32 vcc, 1, v35")
        g("v_mov_b32 v36, 0xffff")
        g("v_mov_b32 v37, 0xffff0000")
        g("v_cndmask_b32 v36, v36, v37, vcc")
        g("v_lshrrev_b32 v35, 1, v34")
        for k in range(4):
            g(f"v_cmp_eq_u32 vcc, {k}, v35")
            g(f"v_cndmask_b32 v{vMASK + k}, 0, v36, vcc")
        for k in range(4):
            g(f"v_mov_b32 v{vACC + k}, 0")

    def ln0(self):
        g = self.g
        g.waitvm("x")
        g(f"v_dot2_f32_bf16 v32, v40, s{sONES}, 0")
        g("v_dot2_f32_bf16 v33, v40, v40, 0")
        for k in range(1, 4):
            g(f"v_dot2_f32_bf16 v32, v{40 + k}, s{sONES}, v32")
            g(f"v_dot2_f32_bf16 v33, v{40 + k}, v{40 + k}, v33")
        self.row_reduce([32, 33])
        self.allreduce_groups(32, 34, "v_add_f32")
        self.allreduce_groups(33, 34, "v_add_f32")
        self.ln_scalars(32, 33, 34)
        for k in range(4):
            g(f"v_lshlrev_b32 v36, 16, v{40 + k}")
            g(f"v_and_b32 v37, 0xffff0000, v{40 + k}")
            g("v_sub_f32 v36, v36, v32")
            g("v_sub_f32 v37, v37, v32")
            g("v_cvt_pk_bf16_f32 v38, v36, v37")
            g("v_lshlrev_b32 v36, 16, v38")
            g("v_and_b32 v37, 0xffff0000, v38")
            g("v_mul_f32 v36, v36, v33")
            g("v_mul_f32 v37, v37, v33")
            g(f"v_cvt_pk_bf16_f32 v{44 + k}, v36, v37")
        g(f"ds_write_b128 v{vL}, v[44:47]")
        g("v_lshrrev_b32 v34, 4, v0")
        g("v_and_b32 v34, 3, v34")
        g(f"s_mul_i32 s{sT0}, s{sWAVE}, {STASH_W + 256}")
        g(f"s_add_u32 s{sT0}, s{sT0}, {STASH0}")
        g(f"v_lshl_add_u32 v{vMC}, v34, 3, s{sT0}")
        g(f"s_mov_b32 s{sW}, 0x01000100")
        g(f"s_mov_b32 s{sW + 1}, 0x03020302")
        g("s_waitcnt lgkmcnt(0)")

    def consume_wq(self, tp):
        g = self.g
        g(f"ds_read_b64 v[{vS}:{vS + 1}], v{vMC} offset:{32 * tp}")
        g("s_waitcnt lgkmcnt(0)")
        for r in range(4):
            g(f"v_perm_b32 v{vP + r}, v{vS + r // 2}, v{vS + r // 2}, s{sW + r % 2}")
        self.pv(vP, ("a", 192 + 16 * (tp % 4)), 0, lambda: g.waitvm(("WQ", tp)))

    def acc_to_lds(self, off):
        g = self.g
        g("v_and_b32 v40, 15, v0")
        g("v_lshlrev_b32 v40, 5, v40")
        g("v_and_b32 v41, 16, v0")
        g("v_lshrrev_b32 v42, 6, v0")
        g("v_lshl_add_u32 v40, v42, 9, v40")
        g("v_add_u32 v40, v40, v41")
        self.exec_set(0xFFFFFFFF)
        g(f"ds_write_b128 v40, v[{vACC}:{vACC + 3}] offset:{off}")
        self.exec_set((1 << 64) - 1)

    def init_softmax(self):
        g = self.g
        for k in range(4):
            g(f"v_mov_b32 v{vACC + k}, 0")
        g(f"v_mov_b32 v{vSUM}, 0")
        g(f"v_mov_b32 v{vMC}, 0xff800000")
        g(f"v_mov_b32 v{vM}, 0xff800000")

    def q1_finalize(self):
        g = self.g
        self.acc_to_lds(SC_Q1)
        g("v_and_b32 v43, 63, v0")
        g("v_lshlrev_b32 v44, 3, v43")
        g("s_waitcnt lgkmcnt(0)")
        g("s_barrier")
        for w in range(4):
            g(f"ds_read_b64 v[{32 + 2 * w}:{33 + 2 * w}], v44 offset:{SC_Q1 + 512 * w}")
        g("v_lshlrev_b32 v45, 2, v0")
        g("v_lshrrev_b32 v46, 4, v43")
        g("v_lshlrev_b32 v46, 4, v46")
        g("v_lshl_add_u32 v46, v42, 8, v46")
        g("s_waitcnt lgkmcnt(0)")
        g("v_add_f32 v32, v32, v34"); g("v_add_f32 v33, v33, v35")
        g("v_add_f32 v36, v36, v38"); g("v_add_f32 v37, v37, v39")
        g("v_add_f32 v32, v32, v36"); g("v_add_f32 v33, v33, v37")
        g("v_cvt_pk_bf16_f32 v32, v32, v33")
        g(f"ds_write_b32 v45, v32 offset:{SC_QB}")
        g("s_waitcnt lgkmcnt(0)")
        for j in range(4):
            g(f"ds_read_b128 v[{vQ + 4 * j}:{vQ + 4 * j + 3}], v46 offset:{SC_QB + 64 * j}")
        self.init_softmax()
        g("s_waitcnt lgkmcnt(0)")
        self.stamp(1)

    def pol1(self, t):
        return "" if t in self.o["l2tiles"] else "nt"

    def dead_vreg(self, busy_slots):
        for s in range(6):
            if s not in busy_slots:
                return slot(s)[1]
        raise RuntimeError("no dead VGPR slot")

    def flag_check(self, reg):
        g = self.g
        ok = g.lab("flok")
        g(f"v_and_b32 v{vS}, 0x80808080, v{reg}")
        g(f"s_mov_b32 s{sT0}, 0x80808080")
        g(f"v_cmp_ne_u32 vcc, s{sT0}, v{vS}")
        g(f"v_mov_b32 v{vS + 1}, v{reg}")
        g(f"s_cbranch_vccz {ok}")
        g(f"s_call_b64 s[{sRET}:{sRET + 1}], L_flagspin")
        g(f"{ok}:")
        g(f"s_mul_i32 s{sT0}, s{sXCC}, 0x01010101")
        g(f"v_cmp_ne_u32 vcc, s{sT0}, v{vS + 1}")
        g(f"s_lshl_b32 s{sT1}, s{sX}, 3")
        g(f"s_lshr_b64 s[{sT2}:{sT3}], vcc, s{sT1}")
        g(f"s_and_b32 s{sT2}, s{sT2}, 0xff")
        g(f"s_cmp_eq_u32 s{sT2}, 0")
        g(f"s_cselect_b32 s{sLOCAL}, {0 if self.o['force_nonlocal'] else 1}, 0")

    def wo_hook(self):
        self.wload("o", vP)

    def pass1(self):
        g = self.g
        gap = self.gap
        self.issue_wq(0)
        self.issue_tile(1, 1, self.pol1(1))
        self.setup_consts()
        self.ln0()
        for tp in range(1, 8):
            self.issue_wq(tp)
            self.issue_tile(tp + 1, tp + 1, self.pol1(tp + 1))
            self.consume_wq(tp - 1)
        self.issue_tile(9, 9, self.pol1(9))
        self.consume_wq(7)
        self.q1_finalize()
        issued = 10
        pending_flag = None
        flag_done = False
        for i in range(64):
            s = i % NSLOT
            hook = self.wo_hook if i == 63 else None
            self.reg_tile(i, s, hook=hook, kb=self.kregs(i, s))
            if i < 4:
                for j in range(8):
                    g(f"ds_write_b128 v{vL}, {R(slot(s), 4 * j, 4)} offset:{(2 * i) * 4096 + 1024 * j}")
            elif i == 4:
                for j in range(4):
                    g(f"ds_write_b128 v{vL}, {R(slot(s), 16 + 4 * j, 4)} offset:{8 * 4096 + 1024 * j}")
            if pending_flag is not None and pending_flag[1] == i:
                self.flag_check(pending_flag[0])
                pending_flag = None
            busy = {t % NSLOT for t in range(i + 1, min(64, i + 2 + 2 * gap))}
            if not flag_done and i >= 34 and not set(range(6)) <= busy:
                flag_done = True
                reg = self.dead_vreg(busy)
                g(f"v_and_b32 v{vS}, 63, v0")
                g(f"v_lshlrev_b32 v{vS}, 2, v{vS}")
                g.vm(f"global_load_dword v{reg}, v{vS}, s[{sDBG}:{sDBG + 1}] sc1", "flag")
                pending_flag = (reg, i + gap)
            if i == self.o["warm_step"] and self.o["warm"]:
                assert i < 50
                self.warm_weights(self.dead_vreg({t % NSLOT for t in range(i + 1, issued)}))
            if 14 <= i < 22:
                sk = g.lab("nc")
                g(f"s_cmp_lg_u32 s{sFLAGSTEP}, {i - 14}")
                g(f"s_cbranch_scc1 {sk}")
                g(f"s_call_b64 s[{sRET}:{sRET + 1}], L_clear")
                g(f"{sk}:")
            behind = issued - (i + 1)
            if issued < 64 and (behind < gap or i % 2 == 1):
                self.issue_tile(issued, issued % NSLOT, self.pol1(issued))
                issued += 1
        assert issued == 64 and flag_done and pending_flag is None

    def pass2(self):
        g = self.g
        gap = self.gap
        self.cur_pass = 2
        g.vmq = []
        self.init_softmax()
        res = [(t, t % NSLOT) for t in range(50, 64)]
        l2 = [t for t in range(5, 50) if t in self.o["l2tiles"]]
        plain = [t for t in range(5, 50) if t not in self.o["l2tiles"]]
        stream = list(plain)
        for k, t in enumerate(l2):
            stream.insert(gap + 2 + 3 * k, t)
        pol = self.o["p2pol"]
        where = {}
        nis = 0
        for k in range(gap):
            t, s = res.pop(0)
            self.reg_tile(t, s, landed=True)
            self.issue_tile(stream[nis], s, pol)
            where[stream[nis]] = s
            nis += 1
        extra = [("r", t, s) for t, s in res] + [("l", t, None) for t in range(5)]
        free_slot = None
        freed = []
        for j, t in enumerate(stream):
            s = where[t]
            last = j == len(stream) - 1
            self.reg_tile(t, s, hook=self.wo_hook if last else None)
            if nis < len(stream):
                self.issue_tile(stream[nis], s, pol)
                where[stream[nis]] = s
                nis += 1
            if j == self.o["warm_step2"] and self.o["warm"]:
                dv = [x for x in freed if x < 6]
                self.warm_weights(slot(dv[0])[1])
            if extra:
                kind, rt, rs = extra.pop(0)
                if kind == "r":
                    self.reg_tile(rt, rs, landed=True)
                    freed.append(rs)
                else:
                    fs = slot(freed[-1])
                    if rt < 4:
                        for jj in range(8):
                            g(f"ds_read_b128 {R(fs, 4 * jj, 4)}, v{vL} offset:{2 * rt * 4096 + 1024 * jj}")
                        self.compute_tile(fs, fs, lambda: g("s_waitcnt lgkmcnt(4)"), lambda: g("s_waitcnt lgkmcnt(0)"))
                    else:
                        for jj in range(4):
                            g(f"ds_read_b128 {R(fs, 16 + 4 * jj, 4)}, v{vL} offset:{8 * 4096 + 1024 * jj}")
                        self.compute_tile(("v", vH), fs, None, lambda: g("s_waitcnt lgkmcnt(0)"))
        assert not extra

    def mid(self):
        g = self.g
        g("L_mid:")
        self.stamp(2)
        self.allreduce_groups(vSUM, 43, "v_add_f32")
        self.acc_to_lds(SC_FIN)
        g("v_lshlrev_b32 v42, 3, v42")
        g(f"v_mov_b32 v44, v{vMC}")
        g(f"v_mov_b32 v45, v{vSUM}")
        self.exec_set(1)
        g(f"ds_write_b64 v42, v[44:45] offset:{SC_ML}")
        self.exec_set((1 << 64) - 1)
        g("v_and_b32 v8, 63, v0")
        g("v_lshlrev_b32 v8, 3, v8")
        g("v_mov_b32 v9, 0")
        g("s_waitcnt lgkmcnt(0)")
        g("s_barrier")
        nb = g.lab("nopub")
        g(f"s_cmp_lg_u32 s{sWAVE}, 0")
        g(f"s_cbranch_scc1 {nb}")
        g(f"ds_read_b128 v[40:43], v9 offset:{SC_ML}")
        g(f"ds_read_b128 v[44:47], v9 offset:{SC_ML + 16}")
        for w in range(4):
            g(f"ds_read_b64 v[{32 + 2 * w}:{33 + 2 * w}], v8 offset:{SC_FIN + 512 * w}")
        g(f"s_lshl_b32 s{sT0}, s{sROLE}, 9")
        g(f"s_add_u32 s{sT0}, s{sT0}, s{sLB}")
        g(f"s_lshl_b32 s{sT1}, s{sROLE}, 3")
        g(f"s_add_u32 s{sT1}, s{sT1}, s{sLB}")
        g(f"s_add_u32 s{sT1}, s{sT1}, {ML}")
        g("s_waitcnt lgkmcnt(4)")
        g("v_max3_f32 v10, v40, v42, v44")
        g("v_max_f32 v10, v10, v46")
        for w in range(4):
            g(f"v_sub_f32 v{40 + 2 * w}, v{40 + 2 * w}, v10")
        for w in range(4):
            g(f"v_exp_f32 v{40 + 2 * w}, v{40 + 2 * w}")
        g("s_waitcnt lgkmcnt(0)")
        g("v_mul_f32 v11, v40, v41")
        g("v_mul_f32 v12, v40, v32")
        g("v_mul_f32 v13, v40, v33")
        for w in range(1, 4):
            g(f"v_fmac_f32 v11, v{40 + 2 * w}, v{41 + 2 * w}")
            g(f"v_fmac_f32 v12, v{40 + 2 * w}, v{32 + 2 * w}")
            g(f"v_fmac_f32 v13, v{40 + 2 * w}, v{33 + 2 * w}")
        for v in (10, 11, 12, 13):
            g(f"v_min_u32 v{v}, -2, v{v}")
        a, b = g.lab("stg"), g.lab("std")
        g(f"s_cmp_eq_u32 s{sLOCAL}, 0")
        g(f"s_cbranch_scc1 {a}")
        for fl, lab in (("", None), (" sc1", a)):
            if lab:
                g(f"s_branch {b}")
                g(f"{lab}:")
            g(f"buffer_store_dwordx2 v[12:13], v8, {srd(rWS)}, s{sT0} offen{fl}")
            g("s_mov_b64 exec, 1")
            g(f"buffer_store_dwordx2 v[10:11], v9, {srd(rWS)}, s{sT1} offen{fl}")
            g("s_mov_b64 exec, -1")
        g(f"{b}:")
        g(f"{nb}:")
        self.stamp(3)
        g("s_waitcnt vmcnt(0)")
        self.perm_weights()
        g("v_and_b32 v9, 7, v0")
        g("v_lshlrev_b32 v9, 3, v9")
        g(f"s_lshl_b32 s{sT0}, s{sX}, 5")
        g(f"s_lshl_b32 s{sT1}, s{sWAVE}, 3")
        g(f"s_add_u32 s{sT0}, s{sT0}, s{sT1}")
        g(f"s_lshl_b32 s{sT1}, s{sT0}, 3")
        g(f"s_add_u32 s{sT1}, s{sT1}, s{sLB}")
        g(f"s_add_u32 s{sT1}, s{sT1}, {ML}")
        g(f"s_lshl_b32 s{sT0}, s{sT0}, 9")
        g(f"s_add_u32 s{sT0}, s{sT0}, s{sLB}")
        loads = [f"buffer_load_dwordx2 v[10:11], v9, {srd(rWS)}, s{sT1} offen sc1"]
        loads += [f"buffer_load_dwordx2 v[{vS + 2 * c}:{vS + 2 * c + 1}], v8, {srd(rWS)}, s{sT0} offen offset:{512 * c} sc1" for c in range(8)]
        self.poll(loads, [10, 11] + list(range(vS, vS + 16)), 12, self.o["h1sleep"])
        self.stamp(4)
        g("v_mov_b32 v12, v10")
        self.row_reduce([12], "v_max_f32", (4, 2, 1))
        g("v_sub_f32 v10, v10, v12")
        g("v_exp_f32 v10, v10")
        g("v_mul_f32 v11, v10, v11")
        self.row_reduce([11], "v_add_f32", (4, 2, 1))
        g("v_rcp_f32 v11, v11")
        g("v_mul_f32 v10, v10, v11")
        for c in range(8):
            g(f"v_readlane_b32 s{sW + c}, v10, {c}")
        g(f"v_mul_f32 v12, s{sW}, v{vS}")
        g(f"v_mul_f32 v13, s{sW}, v{vS + 1}")
        for c in range(1, 8):
            g(f"v_fmac_f32 v12, s{sW + c}, v{vS + 2 * c}")
            g(f"v_fmac_f32 v13, s{sW + c}, v{vS + 2 * c + 1}")
        g("v_cvt_pk_bf16_f32 v12, v12, v13")
        self.dots("v12")
        nw, jw = g.lab("notworker"), g.lab("wdone")
        g(f"s_cmp_ge_u32 s{sI}, s{sCNT}")
        g(f"s_cbranch_scc1 {nw}")
        self.wload("gu", 9)
        g(f"s_branch {jw}")
        g(f"{nw}:")
        self.wload("d", 9)
        g(f"{jw}:")
        self.reduce16(RED_B)
        g("s_waitcnt lgkmcnt(0)")
        g("s_barrier")
        nb = g.lab("nopub")
        g(f"s_cmp_lg_u32 s{sWAVE}, 0")
        g(f"s_cbranch_scc1 {nb}")
        g(f"s_lshl_b32 s{sT0}, s{sROLE}, 6")
        g(f"s_add_u32 s{sT0}, s{sT0}, s{sLB}")
        g(f"s_add_u32 s{sT0}, s{sT0}, {Y1}")
        self.final_read(RED_B, 4, 10)
        g("v_min_u32 v10, -2, v10")
        self.exec_set(0xFFFF)
        g(f"buffer_store_dword v10, v8, {srd(rWS)}, s{sT0} offen sc1")
        self.exec_set((1 << 64) - 1)
        g(f"{nb}:")
        self.stamp(5)
        skc = g.lab("skipC")
        g(f"s_cmp_ge_u32 s{sI}, s{sCNT}")
        g(f"s_cbranch_scc1 {skc}")
        g("s_waitcnt vmcnt(0)")
        self.perm_weights()
        ncs = g.lab("nocs")
        g(f"s_cmp_lg_u32 s{sLB}, 0")
        g(f"s_cbranch_scc1 {ncs}")
        self.dots(f"s{sONES}")
        self.reduce16(CS_C)
        g(f"{ncs}:")
        self.pre_poll_global()
        self.gather_y(Y1)
        self.stamp(6)
        self.dots(f"v{vX}")
        g(f"v_dot2_f32_bf16 v10, v{vX}, s{sONES}, 0")
        g(f"v_dot2_f32_bf16 v11, v{vX}, v{vX}, 0")
        self.wload("d", 9)
        self.reduce16(RED_C, (10, 11))
        g("s_waitcnt lgkmcnt(0)")
        g("s_barrier")
        nb = g.lab("nopub")
        g(f"s_cmp_lg_u32 s{sWAVE}, 0")
        g(f"s_cbranch_scc1 {nb}")
        g(f"s_add_u32 s{sT0}, s{sU0}, s{sI}")
        g(f"s_lshl_b32 s{sT0}, s{sT0}, 5")
        g(f"s_add_u32 s{sT0}, s{sT0}, s{sLB}")
        g(f"s_add_u32 s{sT0}, s{sT0}, {HH}")
        self.final_read(RED_C, 4, 10, (11, 12), CS_C)
        self.bf16r(10)
        g("v_mul_f32_dpp v10, v10, v10 row_ror:8 row_mask:0xf bank_mask:0xf")
        self.bf16r(10)
        self.exec_set(0xFF)
        self.store_local([f"buffer_store_dword v10, v8, {srd(rWS)}, s{sT0} offen"])
        self.exec_set((1 << 64) - 1)
        g(f"{nb}:")
        g(f"{skc}:")
        self.stamp(7)
        skd = g.lab("skipD")
        g(f"s_cmp_ge_u32 s{sWAVE}, 2")
        g(f"s_cbranch_scc1 {skd}")
        g("s_waitcnt vmcnt(0)")
        self.perm_weights()
        for k in range(16):
            g(f"v_mov_b32 v{vS + k}, 0")
        g("v_lshlrev_b32 v8, 3, v0")
        g(f"s_lshl_b32 s{sT0}, s{sU0}, 5")
        g(f"s_add_u32 s{sT0}, s{sT0}, s{sLB}")
        g(f"s_add_u32 s{sT0}, s{sT0}, {HH}")
        g(f"s_mov_b64 exec, s[{sDM}:{sDM + 1}]")
        self.poll([f"buffer_load_dwordx2 v[10:11], v8, {srd(rWS)}, s{sT0} offen sc1"], [10, 11], 12)
        self.stamp(8)
        g(f"v_perm_b32 v10, v11, v10, s{sSEL_HI}")
        self.dots("v10")
        g("s_mov_b64 exec, -1")
        self.reduce16(RED_D)
        g(f"{skd}:")
        nq = g.lab("noq")
        g(f"s_cmp_lg_u32 s{sLB}, 0")
        g(f"s_cbranch_scc1 {nq}")
        self.wload("q", 9)
        g(f"{nq}:")
        g("s_waitcnt lgkmcnt(0)")
        g("s_barrier")
        nb = g.lab("nopub")
        g(f"s_cmp_lg_u32 s{sWAVE}, 0")
        g(f"s_cbranch_scc1 {nb}")
        g(f"s_lshl_b32 s{sT0}, s{sROLE}, 6")
        g(f"s_add_u32 s{sT0}, s{sT0}, s{sLB}")
        g(f"s_add_u32 s{sT0}, s{sT0}, {Y2}")
        self.final_read(RED_D, 2, 10)
        g("v_min_u32 v10, -2, v10")
        self.exec_set(0xFFFF)
        g(f"buffer_store_dword v10, v8, {srd(rWS)}, s{sT0} offen sc1")
        self.exec_set((1 << 64) - 1)
        g(f"{nb}:")
        self.stamp(9)
        g(f"s_cmp_lg_u32 s{sLB}, 0")
        g("s_cbranch_scc1 L_final")
        hx = g.lab("havex1")
        g(f"s_cmp_lt_u32 s{sI}, s{sCNT}")
        g(f"s_cbranch_scc1 {hx}")
        self.gather_y(Y1)
        g(f"{hx}:")
        g("s_waitcnt vmcnt(0)")
        self.perm_weights()
        self.dots(f"s{sONES}")
        self.reduce16(CS_E)
        self.pre_poll_global()
        self.gather_y(Y2)
        self.stamp(10)
        self.dots(f"v{vX}")
        g(f"v_dot2_f32_bf16 v10, v{vX}, s{sONES}, 0")
        g(f"v_dot2_f32_bf16 v11, v{vX}, v{vX}, 0")
        self.reduce16(RED_E, (10, 11))
        g("s_waitcnt lgkmcnt(0)")
        g("s_barrier")
        nb = g.lab("nopub")
        g(f"s_cmp_lg_u32 s{sWAVE}, 0")
        g(f"s_cbranch_scc1 {nb}")
        g(f"s_lshl_b32 s{sT0}, s{sROLE}, 5")
        g(f"s_add_u32 s{sT0}, s{sT0}, {QQ}")
        self.final_read(RED_E, 4, 10, (11, 12), CS_E)
        g("v_lshrrev_b32 v8, 1, v8")
        g("v_mov_b32_dpp v11, v10 quad_perm:[1,0,3,2] row_mask:0xf bank_mask:0xf")
        g("v_cvt_pk_bf16_f32 v10, v10, v11")
        g("v_min_u32 v10, -2, v10")
        self.exec_set(0x5555)
        self.store_local([f"buffer_store_dword v10, v8, {srd(rWS)}, s{sT0} offen"])
        self.exec_set((1 << 64) - 1)
        g(f"{nb}:")
        g("v_and_b32 v8, 48, v0")
        g(f"s_lshl_b32 s{sT0}, s{sHEAD}, 8")
        g(f"s_add_u32 s{sT0}, s{sT0}, {QQ}")
        loads = [f"buffer_load_dwordx4 v[{vQ + 4 * j}:{vQ + 4 * j + 3}], v8, {srd(rWS)}, s{sT0} offen offset:{64 * j} sc1" for j in range(4)]
        self.poll(loads, range(vQ, vQ + 16), 12)
        self.stamp(11)
        if self.diag:
            g("s_waitcnt lgkmcnt(0)")
            g("v_mov_b32 v32, 0")
            for k in range(12):
                g(f"v_writelane_b32 v32, s{4 + 2 * k}, {k}")
            self.diag_store(0, 32)
        g(f"s_mov_b32 s{sLB}, {LST}")

    def diag_store(self, off, reg):
        g = self.g
        g(f"s_lshl_b32 s{sT0}, s{sROLE}, 2")
        g(f"s_add_u32 s{sT0}, s{sT0}, s{sWAVE}")
        g(f"s_lshl_b32 s{sT0}, s{sT0}, 7")
        g(f"s_add_u32 s{sT0}, s{sT0}, {DIAG + off}")
        g("v_and_b32 v33, 63, v0")
        g("v_lshlrev_b32 v33, 2, v33")
        self.exec_set(0xFFFF)
        g(f"buffer_store_dword v{reg}, v33, {srd(rWS)}, s{sT0} offen")
        self.exec_set((1 << 64) - 1)

    def final(self):
        g = self.g
        g("L_final:")
        g(f"s_cmp_lg_u32 s{sROLE}, 0")
        g("s_cbranch_scc1 L_exit")
        self.pre_poll_global()
        self.gather_y(Y2)
        g("v_lshlrev_b32 v8, 2, v0")
        g(f"global_store_dword v8, v{vX}, s[{sOUT}:{sOUT + 1}]")
        g("L_exit:")
        if self.diag:
            g("s_mov_b64 exec, -1")
            g("s_waitcnt vmcnt(0)")
            self.stamp(10)
            g("s_waitcnt lgkmcnt(0)")
            g("v_mov_b32 v32, 0")
            for k in range(12):
                g(f"v_writelane_b32 v32, s{4 + 2 * k}, {k}")
            g(f"v_writelane_b32 v32, s{sLOCAL}, 12")
            g(f"v_writelane_b32 v32, s{sXCC}, 13")
            self.diag_store(64, 32)
        g("L_end:")
        g("s_endpgm")

    def subs(self):
        g = self.g
        g("L_rescale:")
        self.allreduce_groups(vP, vP + 1, "v_max_f32")
        g(f"v_max_f32 v{vM}, v{vP}, v{vM}")
        g(f"v_mul_f32 v{vP + 2}, s{sC}, v{vM}")
        g(f"v_sub_f32 v{vP + 1}, v{vMC}, v{vP + 2}")
        g(f"v_exp_f32 v{vP + 1}, v{vP + 1}")
        g(f"v_mov_b32 v{vMC}, v{vP + 2}")
        for k in range(4):
            g(f"v_mul_f32 v{vACC + k}, v{vACC + k}, v{vP + 1}")
        g(f"v_mul_f32 v{vSUM}, v{vSUM}, v{vP + 1}")
        g(f"s_setpc_b64 s[{sRET}:{sRET + 1}]")
        g("L_clear:")
        g("v_mov_b32 v32, -1")
        g("v_mov_b32 v33, -1")
        g("v_lshlrev_b32 v34, 3, v0")
        g("v_lshlrev_b32 v35, 2, v0")
        for lay in range(2):
            g(f"s_lshl_b32 s{sT0}, s{sROLE}, 9")
            g(f"s_add_u32 s{sT0}, s{sT0}, {lay * LST + P1}")
            g(f"buffer_store_dwordx2 v[32:33], v34, {srd(rWS)}, s{sT0} offen sc1")
        self.exec_set(0xFFFF)
        for lay in range(2):
            for reg in (Y1, Y2):
                g(f"s_lshl_b32 s{sT0}, s{sROLE}, 6")
                g(f"s_add_u32 s{sT0}, s{sT0}, {lay * LST + reg}")
                g(f"buffer_store_dword v32, v35, {srd(rWS)}, s{sT0} offen sc1")
        self.exec_set(0xFF)
        g(f"s_lshl_b32 s{sT0}, s{sROLE}, 5")
        g(f"s_add_u32 s{sT0}, s{sT0}, {QQ}")
        g(f"buffer_store_dword v32, v35, {srd(rWS)}, s{sT0} offen sc1")
        nw = g.lab("clnw")
        g(f"s_cmp_ge_u32 s{sI}, s{sCNT}")
        g(f"s_cbranch_scc1 {nw}")
        for lay in range(2):
            g(f"s_add_u32 s{sT0}, s{sU0}, s{sI}")
            g(f"s_lshl_b32 s{sT0}, s{sT0}, 5")
            g(f"s_add_u32 s{sT0}, s{sT0}, {lay * LST + HH}")
            g(f"buffer_store_dword v32, v35, {srd(rWS)}, s{sT0} offen sc1")
        g(f"{nw}:")
        self.exec_set(1)
        for lay in range(2):
            g(f"s_lshl_b32 s{sT0}, s{sROLE}, 3")
            g(f"s_add_u32 s{sT0}, s{sT0}, {lay * LST + ML}")
            g(f"buffer_store_dwordx2 v[32:33], v34, {srd(rWS)}, s{sT0} offen sc1")
        g(f"v_mov_b32 v34, s{sROLE}")
        g(f"v_mov_b32 v35, s{sXCC}")
        g("s_waitcnt vmcnt(0)")
        g(f"global_store_byte v34, v35, s[{sDBG}:{sDBG + 1}] sc1")
        self.exec_set((1 << 64) - 1)
        g(f"s_setpc_b64 s[{sRET}:{sRET + 1}]")
        g("L_flagspin:")
        g(f"s_mov_b32 s{sSPIN}, {self.o['spin_limit']}")
        g(f"v_and_b32 v{vS + 2}, 63, v0")
        g(f"v_lshlrev_b32 v{vS + 2}, 2, v{vS + 2}")
        g("L_flagspin_top:")
        g("s_sleep 16")
        g(f"global_load_dword v{vS + 1}, v{vS + 2}, s[{sDBG}:{sDBG + 1}] sc1")
        g("s_waitcnt vmcnt(0)")
        g(f"v_and_b32 v{vS}, 0x80808080, v{vS + 1}")
        g(f"v_cmp_ne_u32 vcc, s{sT0}, v{vS}")
        g("s_cbranch_vccz L_flagspin_done")
        g(f"s_sub_u32 s{sSPIN}, s{sSPIN}, 1")
        g("s_cbranch_scc0 L_flagspin_top")
        g("s_branch L_exit")
        g("L_flagspin_done:")
        g(f"s_setpc_b64 s[{sRET}:{sRET + 1}]")

    def build(self):
        g = self.g
        self.prologue()
        self.pass1()
        self.mid()
        self.pass2()
        g("s_branch L_mid")
        self.subs()
        self.final()
        n = g.fix_hazards()
        head = HEADER + f"; @launch grid=(256,1,1) block=(256,1,1) lds={LDS_TOTAL}\n"
        head += '.amdgcn_target "amdgcn-amd-amdhsa--gfx950"\n.text\n'
        head += f".globl {KNAME}\n.p2align 8\n.type {KNAME},@function\n{KNAME}:\n"
        tail = f""".section .rodata,"a"
.p2align 6
.amdhsa_kernel {KNAME}
  .amdhsa_next_free_vgpr 512
  .amdhsa_next_free_sgpr 102
  .amdhsa_accum_offset 256
  .amdhsa_group_segment_fixed_size 0
  .amdhsa_kernarg_size 96
  .amdhsa_user_sgpr_count 2
  .amdhsa_user_sgpr_kernarg_segment_ptr 1
  .amdhsa_system_sgpr_workgroup_id_x 1
  .amdhsa_float_denorm_mode_32 3
.end_amdhsa_kernel
"""
        return head + g.text() + tail


def gen(**kw):
    return K(**kw).build()


if __name__ == "__main__":
    out = sys.argv[1]
    kw = eval("dict(" + (sys.argv[2] if len(sys.argv) > 2 else "") + ")")
    open(out, "w").write(gen(**kw))
```
